```python
import torch

def _softmax(x, axis=-1):
    return torch.softmax(x, dim=axis)
def _gelu(x):
    return torch.nn.functional.gelu(x, approximate="tanh")
def _silu(x):
    return torch.nn.functional.silu(x)
def _sigmoid(x):
    return torch.sigmoid(x)
def _layernorm(x, axis=-1, eps=1e-5):
    m = x.mean(dim=axis, keepdim=True)
    v = x.var(dim=axis, keepdim=True, unbiased=False)
    return (x - m) / torch.sqrt(v + eps)
def _scatter_add(tgt, idx, src, axis=0):
    return tgt.clone().index_add_(axis, idx, src)
def _segment_sum(src, seg, n):
    out = torch.zeros((n,) + src.shape[1:], dtype=src.dtype)
    return out.index_add_(0, seg, src)
def _pad(x, pw):
    flat = tuple(v for pair in reversed(pw) for v in pair)
    return torch.nn.functional.pad(x, flat)

kernel_name = 'gather_scatter__kernel_systems_refs_featgraph__graph'

def setup_inputs():

    _w = (lambda a: (lambda t: t.to(torch.bfloat16) if t.is_floating_point() else t)(torch.as_tensor(a)))
    N, deg, D = 50000, 16, 64
    E = N * deg
    scale = D ** -0.5
    src = (lambda lo, hi, *s: torch.randint(lo, hi, s))(0, N, E).to(torch.int64)
    dst = (lambda lo, hi, *s: torch.randint(lo, hi, s))(0, N, E).to(torch.int64)
    return {
        "x": _w((lambda *s: torch.randn(*s, dtype=torch.bfloat16) * 0.8)(N, D)),
        "src": _w(src),
        "dst": _w(dst),
        "w_q": _w((lambda *s: torch.randn(*s, dtype=torch.bfloat16) * 0.8)(D, D) * scale),
        "w_v": _w((lambda *s: torch.randn(*s, dtype=torch.bfloat16) * 0.05)(D, D) * scale),
    }

def reference(x, src, dst, w_q, w_v):
    N, D = x.shape
    xs = x[src]
    xd = x[dst]
    q = xd @ w_q
    logits = torch.einsum('ed,ed->e', xs, q) * (float(D) ** -0.5)
    alpha = _sigmoid(logits)
    msg = alpha[:, None] * (xs @ w_v)
    return _segment_sum(msg, dst, N)
```

```python
import sys
OPT = dict(a.split('=') for a in sys.argv[2:])
NAME = "gather_scatter__kernel_systems_refs_featgraph__graph"
N = 50000; E = 800000
W = 250; CH = 3200
TPB = 13; NPB = 208; NB = 241
CAPC = 32
BSTR = W * CAPC * 4
SLOTS_BYTES = NB * BSTR
DIROFF = 0x800000
OVFOFF = 0x900000
OVFSTR = 12816
CAP = 384
K1_CNT = NB * 128
K1_OVF = K1_CNT + 1024
K1_LDS = 45312
LIST = 0; LSTR = CAP * 4
CNT = TPB * LSTR
STAGE = 20480
WGT = STAGE + TPB * 8192
K2_LDS = WGT + 16384
ST1 = OPT.get('st1', '')
ST2 = OPT.get('st2', '')
LDX = OPT.get('ldx', '')

o = []
def A(s): o.append(s)
def L(s): o.append("    " + s)

hdr = open('cdna_kernels/%s.s.ref' % NAME).read().split('\n')
for line in hdr:
    if line.startswith('; @launch'): break
    if line.startswith('; Override') or line.startswith('; grid=ceil'): continue
    A(line)
A("; @launch kernel=bin_kernel grid=(%d,1,1) block=(832,1,1) lds=%d" % (W, K1_LDS))
A("; @launch kernel=%s_kernel grid=(%d,1,1) block=(832,1,1) lds=%d" % (NAME, NB, K2_LDS))
A('.amdgcn_target "amdgcn-amd-amdhsa--gfx950"')
A('.text')

def srd(d, lo, hi, size):
    L("s_mov_b32 s%d, %s" % (d, lo)); L("s_and_b32 s%d, %s, 0xffff" % (d+1, hi))
    L("s_mov_b32 s%d, %d" % (d+2, size)); L("s_mov_b32 s%d, 0x00020000" % (d+3))

A(".globl bin_kernel\n.p2align 8\n.type bin_kernel,@function\nbin_kernel:")
L("s_load_dwordx4 s[4:7], s[0:1], 8")
L("s_load_dwordx2 s[8:9], s[0:1], 56")
L("s_cmp_ge_u32 s2, %d" % W)
L("s_cbranch_scc1 K1_END")
L("v_lshlrev_b32 v1, 4, v0")
L("s_mul_i32 s3, s2, %d" % (CH*4))
L("s_waitcnt lgkmcnt(0)")
L("s_add_u32 s4, s4, s3"); L("s_addc_u32 s5, s5, 0")
L("s_add_u32 s6, s6, s3"); L("s_addc_u32 s7, s7, 0")
srd(12, "s4", "s5", CH*4); srd(16, "s6", "s7", CH*4)
L("buffer_load_dwordx4 v[16:19], v1, s[16:19], 0 offen")
L("buffer_load_dwordx4 v[12:15], v1, s[12:15], 0 offen")
srd(20, "s8", "s9", SLOTS_BYTES); srd(28, "s8", "s9", 0x1000000)
for r in range(4, 8): L("v_mov_b32 v%d, -1" % r)
L("ds_write_b128 v1, v[4:7]")
L("ds_write_b128 v1, v[4:7] offset:13312")
L("v_cmp_gt_u32 vcc, 264, v0")
L("v_subrev_u32 v2, 264, v0")
L("v_mov_b32 v3, 1")
L("v_cndmask_b32 v8, 0, v4, vcc")
L("v_cmp_gt_u32 vcc, 64, v2")
L("v_mov_b32 v40, %d" % K1_OVF)
L("v_mov_b32 v41, %d" % (K1_CNT + 1020))
L("v_cndmask_b32 v9, v4, 0, vcc") if False else L("v_cndmask_b32_e64 v9, v4, 0, vcc")
L("v_mov_b32 v10, v9"); L("v_mov_b32 v11, v9")
L("ds_write_b128 v1, v[8:11] offset:26624")
L("v_lshrrev_b32 v42, 3, v0")
L("v_mul_u32_u24 v42, %d, v42" % BSTR)
L("v_and_b32 v43, 7, v0")
L("v_lshl_add_u32 v42, v43, 4, v42")
L("s_lshl_b32 s32, s2, 7")
L("s_add_u32 s33, s32, %d" % (104*BSTR))
L("s_add_u32 s34, s32, %d" % (208*BSTR))
L("v_cmp_gt_u32 vcc, %d, v0" % (CH//4))
L("s_waitcnt lgkmcnt(0)")
L("s_barrier")
L("s_and_saveexec_b64 s[24:25], vcc")
L("s_waitcnt vmcnt(1)")
for j in range(4):
    L("v_mul_u32_u24 v%d, 80660, v%d" % (20+j, 16+j))
    L("v_lshrrev_b32 v%d, 24, v%d" % (20+j, 20+j))
    L("v_lshlrev_b32 v%d, 2, v%d" % (24+j, 20+j))
    L("ds_add_rtn_u32 v%d, v%d, v3 offset:%d" % (28+j, 24+j, K1_CNT))
L("s_waitcnt vmcnt(0)")
for j in range(4):
    L("v_lshl_or_b32 v%d, v%d, 16, v%d" % (12+j, 16+j, 12+j))
for j in range(4):
    L("s_waitcnt lgkmcnt(%d)" % 3)
    L("v_cmp_gt_u32 vcc, 32, v%d" % (28+j))
    L("v_lshlrev_b32 v%d, 2, v%d" % (24+j, 28+j))
    L("v_lshl_add_u32 v%d, v%d, 7, v%d" % (24+j, 20+j, 24+j))
    L("v_cndmask_b32 v%d, v41, v%d, vcc" % (24+j, 24+j))
    L("ds_write_b32 v%d, v%d" % (24+j, 12+j))
L("v_max3_u32 v32, v28, v29, v30")
L("v_max_u32 v32, v32, v31")
L("v_cmp_le_u32 vcc, 32, v32")
L("s_cbranch_vccz K1_NOOVF")
for j in range(4):
    L("v_cmp_le_u32 vcc, 32, v%d" % (28+j))
    L("s_and_saveexec_b64 s[26:27], vcc")
    L("s_cbranch_execz K1_OV%d" % j)
    L("ds_add_rtn_u32 v33, v40, v3")
    L("s_waitcnt lgkmcnt(0)")
    L("v_lshlrev_b32 v33, 2, v33")
    L("ds_write_b32 v33, v%d offset:%d" % (12+j, K1_OVF + 4))
    A("K1_OV%d:" % j)
    L("s_mov_b64 exec, s[26:27]")
A("K1_NOOVF:")
L("s_mov_b64 exec, -1")
L("s_waitcnt lgkmcnt(0)")
L("s_barrier")
L("ds_read_b128 v[4:7], v1")
L("ds_read_b128 v[8:11], v1 offset:13312")
L("ds_read_b128 v[12:15], v1 offset:26624")
L("ds_read_b128 v[16:19], v40")
L("s_waitcnt lgkmcnt(3)")
L("buffer_store_dwordx4 v[4:7], v42, s[20:23], s32 offen %s" % ST1)
L("s_waitcnt lgkmcnt(2)")
L("buffer_store_dwordx4 v[8:11], v42, s[20:23], s33 offen %s" % ST1)
L("s_waitcnt lgkmcnt(1)")
L("buffer_store_dwordx4 v[12:15], v42, s[20:23], s34 offen %s" % ST1)
L("s_waitcnt lgkmcnt(0)")
L("v_readfirstlane_b32 s35, v16")
L("s_lshl_b32 s36, s2, 4")
L("s_add_u32 s36, s36, %d" % DIROFF)
L("s_mul_i32 s37, s2, %d" % OVFSTR)
L("s_add_u32 s37, s37, %d" % OVFOFF)
L("v_cmp_eq_u32 vcc, 0, v0")
L("s_and_saveexec_b64 s[24:25], vcc")
L("s_cbranch_execz K1_NODIR")
L("buffer_store_dwordx4 v[16:19], v0, s[28:31], s36 offen")
L("buffer_store_dwordx4 v[16:19], v0, s[28:31], s37 offen")
A("K1_NODIR:")
L("s_mov_b64 exec, -1")
L("s_cmp_le_u32 s35, 3")
L("s_cbranch_scc1 K1_END")
L("ds_read_b128 v[20:23], v1 offset:%d" % K1_OVF)
L("v_cmp_gt_u32 vcc, %d, v0" % (OVFSTR//16))
L("s_and_saveexec_b64 s[24:25], vcc")
L("s_waitcnt lgkmcnt(0)")
L("buffer_store_dwordx4 v[20:23], v1, s[28:31], s37 offen")
A("K1_END:")
L("s_endpgm")

vLANE = 1
vA0, vA1 = 2, 3
vT = [4, 5, 6, 7]
vLA, vLM = 8, 9
vC = [10, 11, 12, 13]
vNODE = 14
vTMP = 15
Q = 16
WV = 24
ACC = 56
AD = 72
TD = 88
MD = 104
ED = 112
SD = 116
NV = 124
sX, sWS, sWQ, sWV, sOUT = 20, 24, 28, 32, 36
sM = 40
sWAVE, sBASE, sU, sI, sSOFF, s128, sSTG, sSEG, sOFF, sSTART, sQF, sT, sCAPR, sN, sB, sSC, sBIG = 64, 65, 66, 67, 68, 69, 70, 71, 72, 73, 74, 75, 76, 77, 78, 79, 82
K = NAME + "_kernel"
A(".globl %s\n.p2align 8\n.type %s,@function\n%s:" % (K, K, K))
L("s_load_dwordx16 s[4:19], s[0:1], 0")
L("s_cmp_ge_u32 s2, %d" % NB)
L("s_cbranch_scc1 K2_END")
L("v_lshrrev_b32 v%d, 6, v0" % vTMP)
L("v_and_b32 v%d, 63, v0" % vLANE)
L("v_readfirstlane_b32 s%d, v%d" % (sWAVE, vTMP))
L("s_mul_i32 s%d, s2, %d" % (sBASE, NPB))
L("s_mul_i32 s%d, s2, %d" % (sB, BSTR))
L("v_lshlrev_b32 v72, 4, v0")
L("v_add_u32 v73, s%d, v72" % sB)
L("v_add_u32 v73, %d, v73" % (1664*16))
L("v_add_u32 v74, %d, v72" % (DIROFF - 336*16))
L("v_cmp_gt_u32 vcc, 336, v0")
for r in range(96, 100): L("v_mov_b32 v%d, -1" % r)
L("v_cndmask_b32 v73, v74, v73, vcc")
L("v_cmp_gt_u32 vcc, 586, v0")
L("s_add_u32 s%d, s%d, 13312" % (sT, sB))
L("s_waitcnt lgkmcnt(0)")
srd(sWS, "s18", "s19", 0x1000000)
L("buffer_load_dwordx4 v[88:91], v72, s[%d:%d], s%d offen" % (sWS, sWS+3, sB))
L("buffer_load_dwordx4 v[92:95], v72, s[%d:%d], s%d offen" % (sWS, sWS+3, sT))
L("s_and_saveexec_b64 s[80:81], vcc")
L("s_cbranch_execz K2_NOR2")
L("buffer_load_dwordx4 v[96:99], v73, s[%d:%d], 0 offen" % (sWS, sWS+3))
A("K2_NOR2:")
L("s_mov_b64 exec, -1")
srd(sWQ, "s10", "s11", 8192); srd(sWV, "s12", "s13", 8192)
srd(sX, "s4", "s5", N*128); srd(sOUT, "s14", "s15", N*128)
L("s_and_b32 s%d, s%d, 7" % (sT, sWAVE))
L("s_lshl_b32 s%d, s%d, 10" % (sT, sT))
L("v_lshlrev_b32 v75, 4, v%d" % vLANE)
L("s_add_u32 m0, s%d, %d" % (sT, WGT))
L("s_nop 0")
L("buffer_load_dwordx4 v75, s[%d:%d], s%d offen lds" % (sWQ, sWQ+3, sT))
L("s_add_u32 m0, s%d, %d" % (sT, WGT + 8192))
L("s_nop 0")
L("buffer_load_dwordx4 v75, s[%d:%d], s%d offen lds" % (sWV, sWV+3, sT))
L("s_lshl_b32 s%d, s%d, 4" % (sT, sWAVE))
L("s_add_u32 s%d, s%d, s%d" % (sT, sT, sBASE))
L("v_and_b32 v76, 15, v%d" % vLANE)
L("v_lshrrev_b32 v77, 4, v%d" % vLANE)
L("v_add_u32 v%d, s%d, v76" % (vNODE, sT))
L("v_lshlrev_b32 v78, 7, v%d" % vNODE)
L("v_lshl_add_u32 v78, v77, 4, v78")
L("buffer_load_dwordx4 v[%d:%d], v78, s[%d:%d], 0 offen" % (ACC, ACC+3, sX, sX+3))
L("buffer_load_dwordx4 v[%d:%d], v78, s[%d:%d], 0 offen offset:64" % (ACC+4, ACC+7, sX, sX+3))
def lds_init(tid16, t0):
    for r in range(4): L("v_mov_b32 v%d, -1" % (t0 + r))
    L("v_cmp_gt_u32 vcc, 416, v0")
    L("ds_write_b128 v%d, v[%d:%d]" % (tid16, t0, t0+3))
    L("v_cndmask_b32 v%d, 0, v%d, vcc" % (t0+4, t0))
    for r in range(1, 4): L("v_mov_b32 v%d, v%d" % (t0+4+r, t0+4))
    L("ds_write_b128 v%d, v[%d:%d] offset:13312" % (tid16, t0+4, t0+7))
lds_init(72, 104)
L("s_mov_b32 s%d, 128" % s128)
L("s_mov_b32 s%d, %d" % (sCAPR, CAP))
L("s_mov_b32 s%d, 0x%08x" % (sSC, 0xbe38aa3b))
L("s_mov_b32 s%d, 0x40000000" % sBIG)
L("s_lshl_b32 s%d, s%d, 13" % (sSTG, sWAVE))
L("s_add_u32 s%d, s%d, %d" % (sSTG, sSTG, STAGE))
L("s_mul_i32 s%d, s%d, %d" % (sT, sWAVE, LSTR))
L("s_mov_b32 s%d, 0" % sQF)
L("v_lshrrev_b32 v79, 3, v%d" % vLANE)
L("v_lshlrev_b32 v%d, 4, v79" % vLA)
L("v_add_u32 v%d, s%d, v%d" % (vLA, sT, vLA))
L("v_lshlrev_b32 v%d, 4, v77" % vLM)
L("v_add_u32 v%d, s%d, v%d" % (vLM, sT, vLM))
L("v_and_b32 v79, 7, v%d" % vLANE)
L("v_and_b32 v80, 1, v77")
L("v_xor_b32 v79, v79, v80")
L("v_lshlrev_b32 v%d, 4, v79" % vC[0])
for i in range(1, 4): L("v_xor_b32 v%d, %d, v%d" % (vC[i], 32*i, vC[0]))
L("v_and_b32 v79, 3, v76")
L("v_lshrrev_b32 v80, 2, v76")
L("v_lshl_add_u32 v81, v79, 3, v80")
L("v_lshrrev_b32 v80, 3, v76")
L("v_lshl_add_u32 v80, v79, 1, v80")
L("v_lshlrev_b32 v82, 1, v77")
L("v_xor_b32 v82, v82, v80")
L("v_lshlrev_b32 v82, 4, v82")
L("v_lshl_add_u32 v%d, v81, 7, v82" % vA0)
L("v_add_u32 v%d, s%d, v%d" % (vA0, sSTG, vA0))
L("v_xor_b32 v%d, 16, v%d" % (vA1, vA0))
L("v_lshrrev_b32 v80, 2, v76")
L("v_lshl_add_u32 v81, v80, 3, v77")
L("v_lshrrev_b32 v82, 1, v79")
L("v_lshrrev_b32 v83, 1, v77")
L("v_xor_b32 v82, v82, v83")
L("v_lshl_add_u32 v82, v80, 1, v82")
L("v_lshlrev_b32 v82, 4, v82")
L("v_lshl_add_u32 v82, v81, 7, v82")
L("v_and_b32 v83, 1, v79")
L("v_lshl_add_u32 v82, v83, 3, v82")
L("v_add_u32 v%d, s%d, v82" % (vT[0], sSTG))
for ft in range(1, 4): L("v_xor_b32 v%d, %d, v%d" % (vT[ft], 32*ft, vT[0]))
L("v_lshl_add_u32 v81, v77, 3, v80")
L("v_lshlrev_b32 v81, 7, v81")
L("v_lshl_add_u32 v120, v79, 5, v81")
L("v_add_u32 v120, %d, v120" % WGT)
L("v_lshl_add_u32 v81, v77, 2, v80")
L("v_lshlrev_b32 v81, 7, v81")
L("v_lshl_add_u32 v121, v79, 5, v81")
L("v_add_u32 v121, %d, v121" % (WGT + 8192))
L("v_mov_b32 v122, s%d" % sBASE)
L("v_mov_b32 v123, 1")
L("s_waitcnt lgkmcnt(0)")
L("s_barrier")
def insert(cands, first_wait):
    n = len(cands)
    for k, c in enumerate(cands):
        if first_wait and k % 4 == 0:
            L("s_waitcnt vmcnt(%d)" % first_wait[k//4])
            if k == 8:
                L("v_subrev_u32 v116, 336, v0")
                L("v_cmp_gt_u32 vcc, 250, v116")
                L("v_mov_b32 v117, %d" % (CNT + 56))
                L("s_and_saveexec_b64 s[80:81], vcc")
                L("s_cbranch_execz K2_NODIRL")
                L("ds_max_u32 v117, v96")
                L("v_mov_b32 v96, -1")
                A("K2_NODIRL:")
                L("s_mov_b64 exec, -1")
        L("v_sub_u32_sdwa v%d, v%d, v122 dst_sel:DWORD dst_unused:UNUSED_PAD src0_sel:WORD_1 src1_sel:DWORD" % (72+k, c))
        L("v_cmp_gt_u32 s[%d:%d], s%d, v%d" % (sM+2*k, sM+2*k+1, sN, 72+k))
        L("v_lshrrev_b32 v%d, 4, v%d" % (72+k, 72+k))
        L("v_lshlrev_b32 v116, 2, v%d" % (72+k))
        L("s_mov_b64 exec, s[%d:%d]" % (sM+2*k, sM+2*k+1))
        L("ds_add_rtn_u32 v%d, v116, v123 offset:%d" % (104+k, CNT))
        L("s_mov_b64 exec, -1")
        L("v_mul_u32_u24 v%d, %d, v%d" % (72+k, LSTR, 72+k))
    L("s_waitcnt lgkmcnt(0)")
    for k, c in enumerate(cands):
        L("s_mov_b64 exec, s[%d:%d]" % (sM+2*k, sM+2*k+1))
        L("v_lshl_add_u32 v%d, v%d, 2, v%d" % (72+k, 104+k, 72+k))
        L("v_cmpx_gt_u32 vcc, s%d, v%d" % (sCAPR, 104+k))
        L("ds_write_b32 v%d, v%d" % (72+k, c))
    L("s_mov_b64 exec, -1")
L("s_mov_b32 s%d, %d" % (sN, NPB))
insert(list(range(88, 100)), [5, 4, 4])
L("s_waitcnt vmcnt(2) lgkmcnt(0)")
L("s_barrier")
L("s_mov_b32 s%d, 3" % sSTART)
L("s_mov_b32 s%d, 0" % sSEG)
L("s_mov_b32 s%d, 3" % sOFF)
L("v_lshlrev_b32 v116, 2, v%d" % vNODE)
L("v_and_b32 v116, 60, v116")
L("ds_read_b32 v117, v116 offset:%d" % CNT)
L("s_waitcnt lgkmcnt(0)")
L("v_cmp_lt_u32 vcc, s%d, v117" % sCAPR)
L("v_readlane_b32 s%d, v117, s%d" % (sU, sWAVE))
L("v_readlane_b32 s%d, v117, 14" % sT)
L("s_cmp_le_u32 s%d, 3" % sT)
L("s_cselect_b32 s%d, %d, 0" % (sSEG, W))
L("s_and_b32 s%d, vcc_lo, 0x1fff" % sT)
L("s_cbranch_scc0 K2_PROC")
L("s_mov_b32 s%d, 0" % sU)
L("s_mov_b32 s%d, 0" % sSTART)
L("s_mov_b32 s%d, -1" % sSEG)
L("s_mov_b32 s%d, 0" % sOFF)
A("K2_PROC:")
L("s_add_u32 s%d, s%d, 31" % (sU, sU))
L("s_lshr_b32 s%d, s%d, 5" % (sU, sU))
L("ds_read_b128 v[%d:%d], v%d" % (ED, ED+3, vLA))
L("ds_read_b128 v[%d:%d], v%d offset:128" % (MD, MD+3, vLA))
def dma(ereg, buf):
    for i in range(4):
        L("s_add_u32 m0, s%d, %d" % (sSTG, buf*4096 + i*1024))
        L("v_mad_u32_u16 v%d, v%d, s%d, v%d" % (ereg+i, ereg+i, s128, vC[i]))
        L("buffer_load_dwordx4 v%d, s[%d:%d], s%d offen lds %s" % (ereg+i, sX, sX+3, sSOFF, LDX))
L("s_cmp_lt_u32 0, s%d" % sU)
L("s_cselect_b32 s%d, 0, s%d" % (sSOFF, sBIG))
L("s_waitcnt lgkmcnt(1)")
dma(ED, 0)
L("s_cmp_lt_u32 1, s%d" % sU)
L("s_cselect_b32 s%d, 0, s%d" % (sSOFF, sBIG))
L("s_waitcnt lgkmcnt(0)")
dma(MD, 1)
L("v_add_u32 v%d, 256, v%d" % (vTMP, vLA))
L("s_cmp_lg_u32 s%d, 0" % sQF)
L("s_cbranch_scc1 K2_QDONE")
L("s_mov_b32 s%d, 1" % sQF)
for ft in range(4):
    for ks in range(2):
        for h in range(2):
            r = WV + (ft*2+ks)*4 + 2*h
            L("ds_read_b64_tr_b16 v[%d:%d], v120 offset:%d" % (r, r+1, ks*4096 + h*512 + 8*ft))
    if ft == 1: L("s_waitcnt lgkmcnt(4)") if False else None
L("s_waitcnt vmcnt(8) lgkmcnt(0)")
for ks in range(2):
    for ft in range(4):
        r = WV + (ft*2+ks)*4
        L("v_mfma_f32_16x16x32_bf16 v[%d:%d], v[%d:%d], v[%d:%d], %s" % (AD+4*ft, AD+4*ft+3, r, r+3, ACC+4*ks, ACC+4*ks+3,
          "0" if ks == 0 else "v[%d:%d]" % (AD+4*ft, AD+4*ft+3)))
L("s_nop 4")
for ft in range(4):
    for ks in range(2):
        for h in range(2):
            r = WV + (ft*2+ks)*4 + 2*h
            L("ds_read_b64_tr_b16 v[%d:%d], v121 offset:%d" % (r, r+1, ks*4096 + h*2048 + 8*ft))
for k in range(8):
    L("v_cvt_pk_bf16_f32 v%d, v%d, v%d" % (Q+k, AD+2*k, AD+2*k+1))
for k in range(16): L("v_mov_b32 v%d, 0" % (ACC+k))
L("s_waitcnt lgkmcnt(0)")
A("K2_QDONE:")
L("s_mov_b32 s%d, 0" % sI)
L("v_mov_b32 v%d, v%d" % (vLANE, vLM))
L("s_cmp_ge_u32 s%d, s%d" % (sI, sU))
L("s_cbranch_scc1 K2_LDONE")
A("K2_LOOP:")
def unit(buf):
    bo = buf*4096
    L("s_waitcnt vmcnt(4)")
    for t in range(2):
        for ks in range(2):
            r = AD + (t*2+ks)*4
            L("ds_read_b128 v[%d:%d], v%d offset:%d" % (r, r+3, vA1 if ks else vA0, bo + 512*t))
    L("ds_read_b128 v[%d:%d], v%d" % (ED, ED+3, vTMP))
    L("ds_read_b128 v[%d:%d], v%d" % (MD, MD+3, vLANE))
    L("ds_read_b128 v[%d:%d], v%d offset:64" % (MD+4, MD+7, vLANE))
    for ft in range(4):
        for t in range(2):
            r = TD + ft*4 + 2*t
            L("ds_read_b64_tr_b16 v[%d:%d], v%d offset:%d" % (r, r+1, vT[ft], bo + 512*t))
    L("s_add_u32 s%d, s%d, 2" % (sT, sI))
    L("s_cmp_lt_u32 s%d, s%d" % (sT, sU))
    L("s_cselect_b32 s%d, 0, s%d" % (sSOFF, sBIG))
    L("v_add_u32 v%d, 128, v%d" % (vTMP, vTMP))
    L("v_add_u32 v%d, 128, v%d" % (vLANE, vLANE))
    L("s_waitcnt lgkmcnt(11)")
    for ks in range(2):
        for t in range(2):
            r = AD + (t*2+ks)*4
            L("v_mfma_f32_16x16x32_bf16 v[%d:%d], v[%d:%d], v[%d:%d], %s" % (SD+4*t, SD+4*t+3, r, r+3, Q+4*ks, Q+4*ks+3,
              "0" if ks == 0 else "v[%d:%d]" % (SD+4*t, SD+4*t+3)))
    L("s_waitcnt lgkmcnt(0)")
    dma(ED, buf)
    for k in range(8):
        L("v_cmp_eq_u32_sdwa s[%d:%d], v%d, v%d src0_sel:WORD_1 src1_sel:DWORD" % (sM+2*k, sM+2*k+1, MD+k, vNODE))
    for k in range(8): L("v_mul_f32 v%d, s%d, v%d" % (SD+k, sSC, SD+k))
    for k in range(8): L("v_exp_f32 v%d, v%d" % (SD+k, SD+k))
    for k in range(8): L("v_add_f32 v%d, 1.0, v%d" % (SD+k, SD+k))
    for k in range(8): L("v_rcp_f32 v%d, v%d" % (SD+k, SD+k))
    for k in range(8): L("v_cndmask_b32 v%d, 0, v%d, s[%d:%d]" % (SD+k, SD+k, sM+2*k, sM+2*k+1))
    for k in range(4): L("v_cvt_pk_bf16_f32 v%d, v%d, v%d" % (AD+k, SD+2*k, SD+2*k+1))
    L("s_add_u32 s%d, s%d, 1" % (sI, sI))
    L("s_cmp_ge_u32 s%d, s%d" % (sI, sU))
    for ft in range(4):
        L("v_mfma_f32_16x16x32_bf16 v[%d:%d], v[%d:%d], v[%d:%d], v[%d:%d]" % (ACC+4*ft, ACC+4*ft+3, TD+4*ft, TD+4*ft+3, AD, AD+3, ACC+4*ft, ACC+4*ft+3))
unit(0)
L("s_cbranch_scc1 K2_LDONE")
unit(1)
L("s_cbranch_scc0 K2_LOOP")
A("K2_LDONE:")
L("s_cmp_ge_i32 s%d, %d" % (sSEG, W))
L("s_cbranch_scc1 K2_FINAL")
A("K2_NEXT:")
L("s_cmp_lg_i32 s%d, -1" % sSEG)
L("s_cbranch_scc1 K2_NSEG")
L("s_cmp_lt_u32 s%d, %d" % (sOFF, W*CAPC))
L("s_cbranch_scc0 K2_TOSEG")
L("s_mul_i32 s%d, s2, %d" % (sB, BSTR))
L("s_mov_b32 s%d, %d" % (sN, W*CAPC))
L("s_branch K2_DO")
A("K2_TOSEG:")
L("s_mov_b32 s%d, 0" % sSEG)
L("s_mov_b32 s%d, s%d" % (sOFF, sSTART))
A("K2_NSEG:")
L("s_cmp_ge_i32 s%d, %d" % (sSEG, W))
L("s_cbranch_scc1 K2_FINAL")
L("s_lshl_b32 s%d, s%d, 4" % (sT, sSEG))
L("s_add_u32 s%d, s%d, %d" % (sT, sT, DIROFF))
L("s_load_dword s%d, s[18:19], s%d" % (sN, sT))
L("s_waitcnt lgkmcnt(0)")
L("s_min_u32 s%d, s%d, %d" % (sN, sN, CH))
L("s_cmp_lt_u32 s%d, s%d" % (sOFF, sN))
L("s_cbranch_scc1 K2_SEGOK")
L("s_add_u32 s%d, s%d, 1" % (sSEG, sSEG))
L("s_mov_b32 s%d, s%d" % (sOFF, sSTART))
L("s_branch K2_NSEG")
A("K2_SEGOK:")
L("s_mul_i32 s%d, s%d, %d" % (sB, sSEG, OVFSTR))
L("s_add_u32 s%d, s%d, %d" % (sB, sB, OVFOFF + 4))
A("K2_DO:")
L("s_waitcnt vmcnt(0) lgkmcnt(0)")
L("s_nop 7")
L("s_barrier")
L("v_lshlrev_b32 v72, 4, v0")
lds_init(72, 104)
L("v_add_u32 v73, s%d, v0" % sOFF)
L("v_cmp_gt_u32 vcc, s%d, v73" % sN)
L("v_cmp_gt_u32 s[80:81], s%d, v0" % sCAPR)
L("v_mov_b32 v88, -1")
L("v_lshlrev_b32 v73, 2, v73")
L("s_and_b64 vcc, vcc, s[80:81]")
L("s_and_saveexec_b64 s[80:81], vcc")
L("s_cbranch_execz K2_NOLD")
L("buffer_load_dword v88, v73, s[%d:%d], s%d offen" % (sWS, sWS+3, sB))
A("K2_NOLD:")
L("s_mov_b64 exec, -1")
L("s_add_u32 s%d, s%d, %d" % (sOFF, sOFF, CAP))
L("s_mov_b32 s%d, %d" % (sN, NPB))
L("v_mov_b32 v122, s%d" % sBASE)
L("v_mov_b32 v123, 1")
L("s_waitcnt vmcnt(0) lgkmcnt(0)")
L("s_barrier")
insert([88], None)
L("s_waitcnt lgkmcnt(0)")
L("s_barrier")
L("v_lshlrev_b32 v116, 2, v%d" % vNODE)
L("v_and_b32 v116, 60, v116")
L("ds_read_b32 v117, v116 offset:%d" % CNT)
L("s_waitcnt lgkmcnt(0)")
L("s_nop 0")
L("v_readlane_b32 s%d, v117, s%d" % (sU, sWAVE))
L("s_branch K2_PROC")
A("K2_FINAL:")
L("s_waitcnt vmcnt(0)")
L("s_nop 7")
for k in range(8):
    L("v_cvt_pk_bf16_f32 v%d, v%d, v%d" % (AD+k, ACC+2*k, ACC+2*k+1))
for k in range(8):
    L("v_lshlrev_b32 v%d, 16, v%d" % (TD+2*k, AD+k))
    L("v_and_b32 v%d, 0xffff0000, v%d" % (TD+2*k+1, AD+k))
for k in range(16):
    L("v_sub_f32 v%d, v%d, v%d" % (TD+k, ACC+k, TD+k))
for k in range(8):
    L("v_cvt_pk_bf16_f32 v%d, v%d, v%d" % (AD+8+k, TD+2*k, TD+2*k+1))
L("v_lshlrev_b32 v%d, 7, v%d" % (vTMP, vNODE))
L("v_and_b32 v%d, 48, v0" % vA0)
L("v_lshl_add_u32 v%d, v%d, 1, v%d" % (vTMP, vA0, vTMP))
first = True
for part in (1, 0):
    for ks in range(2):
        for ft in range(4):
            r = WV + (ft*2+ks)*4
            b = AD + part*8 + ks*4
            L("v_mfma_f32_16x16x32_bf16 v[%d:%d], v[%d:%d], v[%d:%d], %s" % (ACC+4*ft, ACC+4*ft+3, r, r+3, b, b+3,
              "0" if first else "v[%d:%d]" % (ACC+4*ft, ACC+4*ft+3)))
        first = False
L("s_nop 7")
for k in range(8):
    L("v_cvt_pk_bf16_f32 v%d, v%d, v%d" % (TD+k, ACC+2*k, ACC+2*k+1))
L("buffer_store_dwordx4 v[%d:%d], v%d, s[%d:%d], 0 offen %s" % (TD, TD+3, vTMP, sOUT, sOUT+3, ST2))
L("buffer_store_dwordx4 v[%d:%d], v%d, s[%d:%d], 0 offen offset:16 %s" % (TD+4, TD+7, vTMP, sOUT, sOUT+3, ST2))
A("K2_END:")
L("s_endpgm")

A('.section .rodata,"a"')
for kn, nv, ns in (("bin_kernel", 44, 40), (K, NV, 84)):
    A(".p2align 6")
    A(".amdhsa_kernel %s" % kn)
    A("  .amdhsa_next_free_vgpr %d" % nv)
    A("  .amdhsa_next_free_sgpr %d" % ns)
    A("  .amdhsa_accum_offset %d" % ((nv+3)//4*4))
    A("  .amdhsa_group_segment_fixed_size 0")
    A("  .amdhsa_kernarg_size 64")
    A("  .amdhsa_user_sgpr_count 2")
    A("  .amdhsa_user_sgpr_kernarg_segment_ptr 1")
    A("  .amdhsa_system_sgpr_workgroup_id_x 1")
    A(".end_amdhsa_kernel")
open(sys.argv[1], 'w').write('\n'.join(o) + '\n')
```
